```python
import torch

def _softmax(x, axis=-1):
    return torch.softmax(x, dim=axis)
def _gelu(x):
    return torch.nn.functional.gelu(x, approximate="tanh")
def _silu(x):
    return torch.nn.functional.silu(x)
def _sigmoid(x):
    return torch.sigmoid(x)
def _layernorm(x, axis=-1, eps=1e-5):
    m = x.mean(dim=axis, keepdim=True)
    v = x.var(dim=axis, keepdim=True, unbiased=False)
    return (x - m) / torch.sqrt(v + eps)
def _scatter_add(tgt, idx, src, axis=0):
    return tgt.clone().index_add_(axis, idx, src)
def _segment_sum(src, seg, n):
    out = torch.zeros((n,) + src.shape[1:], dtype=src.dtype)
    return out.index_add_(0, seg, src)
def _pad(x, pw):
    flat = tuple(v for pair in reversed(pw) for v in pair)
    return torch.nn.functional.pad(x, flat)

kernel_name = 'standalone__ssm_conv_s4__prompt'

def setup_inputs():

    _w = (lambda a: (lambda t: t.to(torch.bfloat16) if t.is_floating_point() else t)(torch.as_tensor(a)))
    B, L, D, N = 1, 2048, 512, 128
    A_re = -(lambda _x: torch.exp(torch.as_tensor(_x)))((lambda *s: torch.randn(*s, dtype=torch.bfloat16) * 6.4)(D, N))
    A_im = torch.pi * (lambda *s: torch.randn(*s, dtype=torch.bfloat16) * 0.05)(D, N)
    B_re = (lambda *s: torch.randn(*s, dtype=torch.bfloat16) * 0.1)(D, N)
    B_im = (lambda *s: torch.randn(*s, dtype=torch.bfloat16) * 0.1)(D, N)
    C_re = (lambda *s: torch.randn(*s, dtype=torch.bfloat16) * 0.1)(D, N)
    C_im = (lambda *s: torch.randn(*s, dtype=torch.bfloat16) * 0.1)(D, N)
    log_dt = (lambda *s: torch.randn(*s, dtype=torch.bfloat16) * 0.05)(D) * 0.5 - 4.0
    Dskip = (lambda *s: torch.randn(*s, dtype=torch.bfloat16) * 0.05)(D)
    return {
        "u": _w((lambda *s: torch.randn(*s, dtype=torch.bfloat16) * 0.05)(B, L, D)),
        "A_re": _w(A_re),
        "A_im": _w(A_im),
        "B_re": _w(B_re),
        "B_im": _w(B_im),
        "C_re": _w(C_re),
        "C_im": _w(C_im),
        "log_dt": _w(log_dt),
        "Dskip": _w(Dskip),
    }

def reference(u, A_re, A_im, B_re, B_im, C_re, C_im, log_dt, Dskip):
    Bsz, L, D = u.shape
    dt = torch.exp(log_dt)[:, None]
    A = A_re + 1j * A_im
    Bc = B_re + 1j * B_im
    Cc = C_re + 1j * C_im
    logdA = dt * A
    dB = dt * Bc
    l = (lambda x, dt: x.to(dt))(torch.arange(L), A_re.dtype)
    P = torch.exp(logdA[:, :, None] * l[None, None, :])
    K = torch.einsum("dn,dnl,dn->dl", Cc, P, dB).real
    L2 = 2 * L
    Kp = _pad(K, ((0, 0), (0, L)))
    up = (lambda x, *d: x.permute(*d))(u, 0, 2, 1)
    up = _pad(up, ((0, 0), (0, 0), (0, L)))
    Kf = (lambda x, axes=(-2,-1): torch.fft.rfft2(x.float(), dim=axes))(Kp[:, None, :], axes=(-2, -1))
    Uf = (lambda x, axes=(-2,-1): torch.fft.rfft2(x.float(), dim=axes))(up[:, :, None, :], axes=(-2, -1))
    Yf = Uf * Kf[None, :, :, :]
    y = (lambda x, s, axes=(-2,-1): torch.fft.irfft2(x, s=s, dim=axes).to(torch.bfloat16))(Yf, (1, L2), axes=(-2, -1))[:, :, 0, :L]
    y = (lambda x, *d: x.permute(*d))(y, 0, 2, 1) + u * Dskip[None, None, :]
    return y
```

```python
import sys, math
HDR = """; @launch grid=({grid},1,1) block=({block},1,1) lds={lds}
.amdgcn_target "amdgcn-amd-amdhsa--gfx950"
.text
.globl standalone__ssm_conv_s4__prompt_kernel
.p2align 8
.type standalone__ssm_conv_s4__prompt_kernel,@function
standalone__ssm_conv_s4__prompt_kernel:
"""
FTR = """
.section .rodata,"a"
.p2align 6
.amdhsa_kernel standalone__ssm_conv_s4__prompt_kernel
  .amdhsa_next_free_vgpr {vgpr}
  .amdhsa_next_free_sgpr 64
  .amdhsa_accum_offset {vgpr}
  .amdhsa_group_segment_fixed_size 0
  .amdhsa_kernarg_size 96
  .amdhsa_user_sgpr_count 2
  .amdhsa_user_sgpr_kernarg_segment_ptr 1
  .amdhsa_system_sgpr_workgroup_id_x 1
.end_amdhsa_kernel
"""
def stamp(i): return f"  s_memrealtime s[{40+2*i}:{41+2*i}]"
def write_stamps(n, grid):
    s = ["  s_waitcnt lgkmcnt(0)",
         "  v_and_b32 v2, 63, v0",
         "  v_cmp_eq_u32 vcc, 0, v2",
         "  s_and_saveexec_b64 s[30:31], vcc",
         "  s_cbranch_execz L_done",
         "  v_lshrrev_b32 v2, 6, v0",
         "  s_lshl_b32 s3, s2, 4",
         "  v_add_u32 v2, s3, v2",
         "  v_lshlrev_b32 v2, 6, v2"]
    for i in range(n):
        s.append(f"  v_mov_b32 v4, s{40+2*i}\n  v_mov_b32 v5, s{41+2*i}")
        s.append(f"  global_store_dwordx2 v2, v[4:5], s[8:9] offset:{8*i}")
        s.append("  s_nop 1")
    return "\n".join(s)
def gen(mode, flags="", block=256, passes=1, store=True, stflags="", grid=256, width=1):
    s = [HDR.format(grid=grid, block=block, lds=0)]
    a = s.append
    a(stamp(0))
    a(f"  s_cmp_ge_u32 s2, {grid}\n  s_cbranch_scc1 L_done")
    a("  s_load_dwordx2 s[4:5], s[0:1], 0\n  s_load_dwordx2 s[6:7], s[0:1], 72\n  s_load_dwordx2 s[8:9], s[0:1], 88")
    a("  s_waitcnt lgkmcnt(0)")
    a(stamp(1))
    a("  s_mov_b32 s12, s4\n  s_mov_b32 s13, s5\n  s_mov_b32 s14, 0x200000\n  s_mov_b32 s15, 0x20000")
    a("  s_mov_b32 s16, s6\n  s_mov_b32 s17, s7\n  s_mov_b32 s18, 0x200000\n  s_mov_b32 s19, 0x20000")
    if mode == "scat":
        ngroups = 256 // width
        per_xcd = ngroups // 8
        a(f"  s_and_b32 s3, s2, 7\n  s_mul_i32 s3, s3, {per_xcd}\n  s_lshr_b32 s10, s2, 3\n  s_and_b32 s20, s10, {per_xcd-1}\n  s_add_u32 s3, s3, s20")
        a(f"  s_lshl_b32 s3, s3, {2+int(math.log2(width))}")
        rows = 2048 // width
        a(f"  s_lshr_b32 s20, s10, {int(math.log2(per_xcd))}\n  s_mul_i32 s20, s20, {rows*1024}\n  s_add_u32 s3, s3, s20")
        nper = rows // block
        a("  v_lshlrev_b32 v1, 10, v0\n  v_add_u32 v1, s3, v1")
        step = block * 1024
        ld = {1:"dword",2:"dwordx2",4:"dwordx4"}[width]
        def reg(i):
            return f"v{8+i}" if width==1 else f"v[{8+i*width}:{8+i*width+width-1}]"
    else:
        width = 4
        nper = 8192 // (block*16)
        a("  s_lshl_b32 s3, s2, 13\n  v_lshlrev_b32 v1, 4, v0\n  v_add_u32 v1, s3, v1")
        step = block*16
        ld = "dwordx4"
        def reg(i): return f"v[{8+i*4}:{8+i*4+3}]"
    for p in range(passes):
        for i in range(nper):
            a(f"  s_mov_b32 s11, {i*step}")
            a(f"  buffer_load_{ld} {reg(i)}, v1, s[12:15], s11 offen {flags}")
        a("  s_waitcnt vmcnt(0)")
        a(stamp(2+p))
    if store:
        for i in range(nper):
            a(f"  s_mov_b32 s11, {i*step}")
            a(f"  buffer_store_{ld} {reg(i)}, v1, s[16:19], s11 offen {stflags}")
        a(stamp(2+passes))
        a("  s_waitcnt vmcnt(0)")
        a(stamp(3+passes))
        n = 4+passes
    else:
        n = 2+passes
    a(write_stamps(n, grid))
    a("L_done:\n  s_endpgm")
    a(FTR.format(vgpr=64))
    return "\n".join(s)
V = {
 "coal": gen("coal"),
 "scat": gen("scat"),
 "scat2p": gen("scat", passes=2),
 "scat_nt": gen("scat", flags="nt", stflags="nt"),
 "scat_sc1": gen("scat", flags="sc1", stflags="sc1"),
 "scat_sc01": gen("scat", flags="sc0 sc1", stflags="sc0 sc1"),
 "scat_w2": gen("scat", width=2),
 "scat_w4": gen("scat", width=4),
 "scat_1024": gen("scat", block=1024),
}
if __name__ == "__main__":
  for k, v in V.items():
      open(f"mb2_{k}.s", "w").write(v)
```

```python
import sys, math
from gen_mb2 import HDR, FTR
NB = 64
TESTS = [
 ("b128_aligned_lin", "v_lshlrev_b32 v40, 4, v3", "ds_read_b128 v[{d}:{d3}], v40 offset:{off}"),
 ("b128_toep2B(16x4)", "v_and_b32 v41, 15, v3\n v_lshlrev_b32 v41, 1, v41\n v_lshrrev_b32 v42, 4, v3\n v_lshlrev_b32 v42, 4, v42\n v_add_u32 v40, v41, v42", "ds_read_b128 v[{d}:{d3}], v40 offset:{off}"),
 ("b128_4Baligned(lane*4)", "v_lshlrev_b32 v40, 2, v3", "ds_read_b128 v[{d}:{d3}], v40 offset:{off}"),
 ("b128_8Baligned(lane*8)", "v_lshlrev_b32 v40, 3, v3", "ds_read_b128 v[{d}:{d3}], v40 offset:{off}"),
 ("b128_lin_off2", "v_lshlrev_b32 v40, 4, v3\n v_add_u32 v40, 2, v40", "ds_read_b128 v[{d}:{d3}], v40 offset:{off}"),
 ("b128_lin_off4", "v_lshlrev_b32 v40, 4, v3\n v_add_u32 v40, 4, v40", "ds_read_b128 v[{d}:{d3}], v40 offset:{off}"),
 ("b128_lin_off8", "v_lshlrev_b32 v40, 4, v3\n v_add_u32 v40, 8, v40", "ds_read_b128 v[{d}:{d3}], v40 offset:{off}"),
 ("b64_aligned_lin", "v_lshlrev_b32 v40, 3, v3", "ds_read_b64 v[{d}:{d1}], v40 offset:{off}"),
 ("b64_lin_off2", "v_lshlrev_b32 v40, 3, v3\n v_add_u32 v40, 2, v40", "ds_read_b64 v[{d}:{d1}], v40 offset:{off}"),
 ("b64_lin_off4", "v_lshlrev_b32 v40, 3, v3\n v_add_u32 v40, 4, v40", "ds_read_b64 v[{d}:{d1}], v40 offset:{off}"),
 ("b64_toep2B", "v_and_b32 v41, 15, v3\n v_lshlrev_b32 v41, 1, v41\n v_lshrrev_b32 v42, 4, v3\n v_lshlrev_b32 v42, 4, v42\n v_add_u32 v40, v41, v42", "ds_read_b64 v[{d}:{d1}], v40 offset:{off}"),
 ("b32_aligned", "v_lshlrev_b32 v40, 2, v3", "ds_read_b32 v{d}, v40 offset:{off}"),
 ("b32_off2", "v_lshlrev_b32 v40, 2, v3\n v_add_u32 v40, 2, v40", "ds_read_b32 v{d}, v40 offset:{off}"),
 ("read2_b32", "v_lshlrev_b32 v40, 2, v3", "ds_read2_b32 v[{d}:{d1}], v40 offset0:{o4} offset1:{o5}"),
 ("read2_b64", "v_lshlrev_b32 v40, 3, v3", "ds_read2_b64 v[{d}:{d3}], v40 offset0:{o4} offset1:{o5}"),
 ("w_b32", "v_lshlrev_b32 v40, 2, v3", "ds_write_b32 v40, v{d} offset:{off}"),
 ("w_b64", "v_lshlrev_b32 v40, 3, v3", "ds_write_b64 v40, v[{d}:{d1}] offset:{off}"),
 ("w_b128", "v_lshlrev_b32 v40, 4, v3", "ds_write_b128 v40, v[{d}:{d3}] offset:{off}"),
 ("w_b16", "v_lshlrev_b32 v40, 1, v3", "ds_write_b16 v40, v{d} offset:{off}"),
 ("w_addtid", "s_mov_b32 m0, 0", "ds_write_addtid_b32 v{d} offset:{off}"),
 ("w_2st64", "v_lshlrev_b32 v40, 2, v3", "ds_write2st64_b32 v40, v{d}, v{d1} offset0:{o4} offset1:{o5}"),
 ("w_b64_off2", "v_lshlrev_b32 v40, 3, v3\n v_add_u32 v40, 2, v40", "ds_write_b64 v40, v[{d}:{d1}] offset:{off}"),
 ("r_u16d16", "v_lshlrev_b32 v40, 1, v3", "ds_read_u16_d16 v{d}, v40 offset:{off}"),
]
def gen(block):
    grid=256
    s = [HDR.format(grid=grid, block=block, lds=65536)]
    a = s.append
    a(f"  s_cmp_ge_u32 s2, {grid}\n  s_cbranch_scc1 L_done")
    a("  s_load_dwordx2 s[8:9], s[0:1], 88")
    for r in range(8, 40): a(f"  v_mov_b32 v{r}, 1.0")
    a("  s_waitcnt lgkmcnt(0)")
    a("  v_lshrrev_b32 v2, 6, v0\n s_lshl_b32 s3, s2, 4\n v_add_u32 v2, s3, v2\n v_lshlrev_b32 v2, 8, v2")
    a("  v_and_b32 v3, 63, v0")
    for ti, (name, setup, fmt) in enumerate(TESTS):
        a("  " + setup)
        a(f"  s_mov_b32 s25, 2\nL_o{ti}:")
        a("  s_barrier")
        a("  s_memtime s[20:21]\n  s_waitcnt lgkmcnt(0)")
        a(f"  s_mov_b32 s24, 8\nL_t{ti}:")
        for i in range(NB):
            r = 8 + (i % 8) * 4
            a("  " + fmt.format(d=r, d1=r+1, d3=r+3, off=(i % 16) * 1024, o4=(i%16)*2, o5=(i%16)*2+1))
            if i % 8 == 7: a("  s_waitcnt lgkmcnt(8)" if i < NB-1 else "  s_waitcnt lgkmcnt(0)")
        a(f"  s_sub_u32 s24, s24, 1\n  s_cmp_lg_u32 s24, 0\n  s_cbranch_scc1 L_t{ti}")
        a("  s_barrier")
        a("  s_memtime s[22:23]\n  s_waitcnt lgkmcnt(0)")
        a(f"  s_sub_u32 s25, s25, 1\n  s_cmp_lg_u32 s25, 0\n  s_cbranch_scc1 L_o{ti}")
        a("  s_sub_u32 s22, s22, s20")
        a("  v_mov_b32 v4, s22")
        a("  v_cmp_eq_u32 vcc, 0, v3\n  s_and_saveexec_b64 s[30:31], vcc")
        a(f"  global_store_dword v2, v4, s[8:9] offset:{4*ti}")
        a("  s_mov_b64 exec, s[30:31]")
    a("  s_barrier")
    a("  v_lshlrev_b32 v40, 2, v0")
    a("  v_lshlrev_b32 v41, 1, v0")
    a("  v_add_u32 v42, 1, v41\n v_lshl_or_b32 v41, v42, 16, v41")
    a("  ds_write_b32 v40, v41")
    a("  s_waitcnt lgkmcnt(0)\n s_barrier")
    a("  v_lshlrev_b32 v40, 1, v3")
    a("  ds_read_b128 v[8:11], v40")
    a("  ds_read_b64 v[12:13], v40")
    a("  s_waitcnt lgkmcnt(0)")
    a("  s_cmp_lg_u32 s2, 0\n s_cbranch_scc1 L_done")
    a("  v_lshlrev_b32 v40, 5, v0\n v_add_u32 v40, 0x200000, v40")
    a("  global_store_dwordx4 v40, v[8:11], s[8:9]\n global_store_dwordx2 v40, v[12:13], s[8:9] offset:16")
    a("L_done:\n  s_endpgm")
    a(FTR.format(vgpr=64))
    return "\n".join(s)
for b in [256, 512]:
    open(f"mb8_{b}.s", "w").write(gen(b))
open("mb8_names.txt","w").write("\n".join(n.replace(" ","_")+" "+str(8*NB) for n,_,f in TESTS))
```

```python
import sys, math
from gen_mb2 import HDR, FTR
def gen(pattern, active=32, width=2, flags=''):
    grid=256; block=256
    s = [HDR.format(grid=grid, block=block, lds=0)]
    a = s.append
    a(f"  s_cmp_ge_u32 s2, {grid}\n  s_cbranch_scc1 L_done")
    a("  s_load_dwordx2 s[4:5], s[0:1], 0\n  s_load_dwordx2 s[8:9], s[0:1], 88")
    a("  s_waitcnt lgkmcnt(0)")
    a("  s_and_b32 s20, s2, 7\n  s_lshr_b32 s21, s2, 3")
    if pattern == "col":
        a("  s_lshl_b32 s23, s20, 7\n s_lshr_b32 s3, s21, 1\n s_lshl_b32 s3, s3, 3\n s_add_u32 s3, s3, s23")
        a("  v_lshlrev_b32 v1, 10, v0\n v_add_u32 v1, s3, v1")
        step = 256*1024
    elif pattern == "lin":
        a("  s_lshl_b32 s23, s20, 18\n s_lshr_b32 s3, s21, 1\n s_lshl_b32 s3, s3, 3\n s_add_u32 s3, s3, s23")
        a("  v_lshlrev_b32 v1, 7, v0\n v_add_u32 v1, s3, v1")
        step = 256*128
    elif pattern == "col2":
        a("  s_lshl_b32 s23, s20, 6\n s_lshr_b32 s3, s21, 2\n s_lshl_b32 s3, s3, 3\n s_add_u32 s3, s3, s23\n s_lshr_b32 s24, s21, 1\n s_and_b32 s24, s24, 1\n s_lshl_b32 s24, s24, 9\n s_add_u32 s3, s3, s24")
        a("  v_lshlrev_b32 v1, 10, v0\n v_add_u32 v1, s3, v1")
        step = 256*1024
    a(f"  s_cmp_ge_u32 s21, {active}\n s_cbranch_scc1 L_done")
    for p in range(3):
        a("  s_barrier")
        a(f"  s_memtime s[{40+4*p}:{41+4*p}]\n s_waitcnt lgkmcnt(0)")
        for i in range(8):
            a(f"  v_add_u32 v2, {i*step}, v1")
            a(f"  global_load_dwordx2 v[{8+2*i}:{9+2*i}], v2, s[4:5] {flags}" if width == 2 else (f"  global_load_dword v{8+2*i}, v2, s[4:5] {flags}" if width == 1 else f"  global_load_dwordx4 v[{8+4*i}:{11+4*i}], v2, s[4:5] {flags}"))
        a("  s_waitcnt vmcnt(0)\n s_barrier")
        a(f"  s_memtime s[{42+4*p}:{43+4*p}]\n s_waitcnt lgkmcnt(0)")
        a("  s_sleep 20")
    a("  v_lshrrev_b32 v2, 6, v0\n s_lshl_b32 s3, s2, 4\n v_add_u32 v2, s3, v2\n v_lshlrev_b32 v2, 8, v2\n v_and_b32 v3, 63, v0")
    a("  v_cmp_eq_u32 vcc, 0, v3\n  s_and_saveexec_b64 s[30:31], vcc")
    for p in range(3):
        a(f"  s_sub_u32 s22, s{42+4*p}, s{40+4*p}\n v_mov_b32 v4, s22\n global_store_dword v2, v4, s[8:9] offset:{4*p}")
    a("L_done:\n  s_endpgm")
    a(FTR.format(vgpr=64))
    return "\n".join(s)
for name, kw in [("a16", dict(active=16)), ("a8", dict(active=8)), ("a4", dict(active=4)), ("w1", dict(width=1)), ("nt", dict(flags="nt")), ("sc1", dict(flags="sc1")), ("sc01", dict(flags="sc0 sc1")), ("sc0", dict(flags="sc0"))]:
    open(f"mb14_{name}.s","w").write(gen("col", **kw))
open("mb14_names.txt","w").write("pass0 1\npass1 1\npass2 1")
```

```python
from gen_mb2 import HDR, FTR
def gen(block, lds, vgpr, body):
    s = [HDR.format(grid=256, block=block, lds=lds)]
    a = s.append
    a("  s_cmp_ge_u32 s2, 256\n  s_cbranch_scc1 L_done")
    a("  s_load_dwordx2 s[8:9], s[0:1], 88")
    a("  s_memtime s[20:21]\n s_memrealtime s[22:23]")
    for r in range(8, 56): a(f"  v_mov_b32 v{r}, 0.5")
    a("  s_waitcnt lgkmcnt(0)")
    a(body)
    a("  s_memtime s[24:25]\n s_memrealtime s[26:27]\n s_waitcnt lgkmcnt(0)")
    a("  s_sub_u32 s24, s24, s20\n s_sub_u32 s26, s26, s22")
    a("  v_lshrrev_b32 v2, 6, v0\n s_lshl_b32 s3, s2, 4\n v_add_u32 v2, s3, v2\n v_lshlrev_b32 v2, 8, v2\n v_and_b32 v3, 63, v0")
    a("  v_mov_b32 v4, s24\n v_mov_b32 v5, s26\n v_cmp_eq_u32 vcc, 0, v3\n s_and_saveexec_b64 s[30:31], vcc")
    a("  global_store_dwordx2 v2, v[4:5], s[8:9]")
    a("L_done:\n  s_endpgm")
    a(FTR.format(vgpr=vgpr))
    return "\n".join(s)
sleep = "  s_mov_b32 s28, 150\nL_s:\n s_sleep 1\n s_sub_u32 s28, s28, 1\n s_cmp_lg_u32 s28, 0\n s_cbranch_scc1 L_s"
pk = "  s_mov_b32 s28, 30\nL_s:\n" + "\n".join(f"  v_pk_fma_f32 v[{8+2*(i%8)}:{9+2*(i%8)}], v[44:45], v[46:47], v[{8+2*(i%8)}:{9+2*(i%8)}]" for i in range(32)) + "\n s_sub_u32 s28, s28, 1\n s_cmp_lg_u32 s28, 0\n s_cbranch_scc1 L_s"
mf = "  s_mov_b32 s28, 30\nL_s:\n" + "\n".join(f"  v_mfma_f32_16x16x32_bf16 v[{8+4*(i%4)}:{11+4*(i%4)}], v[40:43], v[44:47], v[{8+4*(i%4)}:{11+4*(i%4)}]" for i in range(16)) + "\n s_sub_u32 s28, s28, 1\n s_cmp_lg_u32 s28, 0\n s_cbranch_scc1 L_s"
for name, args in [("sleep_big", (768, 130048, 168, sleep)), ("sleep_small", (256, 0, 64, sleep)), ("pk_big", (768, 130048, 168, pk)), ("pk_small", (256, 0, 64, pk)), ("mf_big", (768, 130048, 168, mf)), ("mf_small", (256, 0, 64, mf))]:
    open(f"mb18_{name}.s", "w").write(gen(*args))
```
